```python
import torch

def _softmax(x, axis=-1):
    return torch.softmax(x, dim=axis)

def _gelu(x):
    return torch.nn.functional.gelu(x, approximate='tanh')

def _silu(x):
    return torch.nn.functional.silu(x)

def _sigmoid(x):
    return torch.sigmoid(x)

def _layernorm(x, axis=-1, eps=1e-05):
    m = x.mean(dim=axis, keepdim=True)
    v = x.var(dim=axis, keepdim=True, unbiased=False)
    return (x - m) / torch.sqrt(v + eps)

def _scatter_add(tgt, idx, src, axis=0):
    return tgt.clone().index_add_(axis, idx, src)

def _segment_sum(src, seg, n):
    out = torch.zeros((n,) + src.shape[1:], dtype=src.dtype)
    return out.index_add_(0, seg, src)

def _pad(x, pw):
    flat = tuple((v for pair in reversed(pw) for v in pair))
    return torch.nn.functional.pad(x, flat)
kernel_name = 'adaLN_cond__ssm_conv_h3__mixer_gmlp__prompt'

def setup_inputs():

    _w = lambda a: (lambda t: t.to(torch.bfloat16) if t.is_floating_point() else t)(torch.as_tensor(a))

    def _A_setup():
        B, S, D = (1, 2048, 576)
        ks = 4
        return {'q': _w((lambda *s: torch.randn(*s, dtype=torch.bfloat16) * 0.05)(B, S, D)), 'k': _w((lambda *s: torch.randn(*s, dtype=torch.bfloat16) * 0.8)(B, S, D)), 'v': _w((lambda *s: torch.randn(*s, dtype=torch.bfloat16) * 0.8)(B, S, D)), 'shift_k': _w((lambda *s: torch.randn(*s, dtype=torch.bfloat16) * 0.8)(D, ks) * 0.5), 'ssm_k': _w((lambda *s: torch.randn(*s, dtype=torch.bfloat16) * 0.8)(D, S) * (1.0 / S ** 0.5)), 'ssm_D': _w((lambda *s: torch.randn(*s, dtype=torch.bfloat16) * 0.8)(D))}
    _A_in = _A_setup()

    def _B_setup():
        B, S, D, F = (1, 2048, 576, 4608)
        Fh = F // 2
        return {'x': _w((lambda *s: torch.randn(*s, dtype=torch.bfloat16) * 0.05)(B, S, D)), 'w_in': _w((lambda *s: torch.randn(*s, dtype=torch.bfloat16) * 0.4)(D, 2 * Fh)), 'w_sp': _w(0.01 * (lambda *s: torch.randn(*s, dtype=torch.bfloat16) * 0.4)(S, S)), 'b_sp': _w(1.0 + 0.01 * (lambda *s: torch.randn(*s, dtype=torch.bfloat16) * 0.05)(S)), 'w_out': _w((lambda *s: torch.randn(*s, dtype=torch.bfloat16) * 0.05)(Fh, D))}
    _B_in = _B_setup()
    return {'A_q': _A_in['q'], 'A_k': _A_in['k'], 'A_v': _A_in['v'], 'A_shift_k': _A_in['shift_k'], 'A_ssm_k': _A_in['ssm_k'], 'A_ssm_D': _A_in['ssm_D'], 'B_x': _B_in['x'], 'B_w_in': _B_in['w_in'], 'B_w_sp': _B_in['w_sp'], 'B_b_sp': _B_in['b_sp'], 'B_w_out': _B_in['w_out'], 'c': _w((lambda *s: torch.randn(*s, dtype=torch.bfloat16) * 0.1)(1, 576) * 8.0), 'w_mod': _w((lambda *s: torch.randn(*s, dtype=torch.bfloat16) * 0.1)(576, 6 * 576) * 576 ** (-0.5) * 8.0)}

def reference(A_q, A_k, A_v, A_shift_k, A_ssm_k, A_ssm_D, B_x, B_w_in, B_w_sp, B_b_sp, B_w_out, c, w_mod):

    def _A_ref(q, k, v, shift_k, ssm_k, ssm_D):
        B, S, D = q.shape
        ks = shift_k.shape[-1]
        k_pad = _pad(k, ((0, 0), (ks - 1, 0), (0, 0)))
        k_shift = torch.zeros_like(k)
        for t in range(ks):
            k_shift = k_shift + k_pad[:, t:t + S, :] * shift_k[:, ks - 1 - t][None, None, :]
        kv = k_shift * v
        L = 2 * S
        kv_pad = _pad(kv, ((0, 0), (0, S), (0, 0)))
        kf_pad = _pad(ssm_k, ((0, 0), (0, S)))
        kv_f = (lambda x, axes=(-2, -1): torch.fft.rfft2(x.float(), dim=axes))(kv_pad[:, None, :, :], axes=(1, 2))
        kf_f = (lambda x, axes=(-2, -1): torch.fft.rfft2(x.float(), dim=axes))(kf_pad[:, None, :], axes=(1, 2))
        kf_f = (lambda x, *d: x.permute(*d))(kf_f, 1, 2, 0)
        y_f = kv_f * kf_f[None, :, :, :]
        y = (lambda x, s, axes=(-2, -1): torch.fft.irfft2(x, s=s, dim=axes).to(torch.bfloat16))(y_f, (1, L), axes=(1, 2))[:, 0, :S, :]
        y = y + kv * ssm_D[None, None, :]
        return q * y

    def _B_ref(x, w_in, w_sp, b_sp, w_out):
        B, S, D = x.shape
        F = w_in.shape[-1]
        Fh = F // 2
        z = _gelu(torch.einsum('bsd,df->bsf', x, w_in))
        z1 = z[..., :Fh].clone()
        z2 = _layernorm(z[..., Fh:], axis=-1)
        g = torch.einsum('ts,bsf->btf', w_sp, z2) + b_sp[None, :, None]
        return torch.einsum('bsf,fd->bsd', z1 * g, w_out)
    x = A_q
    mod = (_silu(c) @ w_mod).reshape(c.shape[0], 6, 1, -1)
    sa, ca, ga, sb, cb, gb = (mod[:, 0].clone(), mod[:, 1].clone(), mod[:, 2].clone(), mod[:, 3].clone(), mod[:, 4].clone(), mod[:, 5].clone())
    h = _layernorm(x, axis=-1) * (1 + ca) + sa
    x = x + ga * _A_ref(h, A_k, A_v, A_shift_k, A_ssm_k, A_ssm_D)
    h = _layernorm(x, axis=-1) * (1 + cb) + sb
    x = x + gb * _B_ref(h, B_w_in, B_w_sp, B_b_sp, B_w_out)
    return x
```

```python
class Asm:
    def __init__(self):
        self.lines = []
        self.nlab = 0

    def e(self, s):
        self.lines.append("    " + s)

    def c(self, s):
        self.lines.append("    ; " + s)

    def label(self, name):
        self.lines.append(name + ":")

    def newlabel(self, base):
        self.nlab += 1
        return "L_%s_%d" % (base, self.nlab)

    def raw(self, s):
        self.lines.append(s)

    def text(self):
        return "\n".join(self.lines) + "\n"

    def kernel_begin(self, name):
        self.raw(".text")
        self.raw(".globl %s" % name)
        self.raw(".p2align 8")
        self.raw(".type %s,@function" % name)
        self.label(name)

    def srd(self, d, base, nbytes, add=0):
        if add:
            self.e("s_add_u32 s%d, s%d, 0x%x" % (d, base, add))
            self.e("s_addc_u32 s%d, s%d, 0" % (d + 1, base + 1))
        else:
            self.e("s_mov_b32 s%d, s%d" % (d, base))
            self.e("s_mov_b32 s%d, s%d" % (d + 1, base + 1))
        self.e("s_mov_b32 s%d, 0x%x" % (d + 2, nbytes))
        self.e("s_mov_b32 s%d, 0x00020000" % (d + 3))


def descriptor(name, vgpr, sgpr, accum, kernarg=128):
    return """.section .rodata,"a"
.p2align 6
.amdhsa_kernel %s
  .amdhsa_next_free_vgpr %d
  .amdhsa_next_free_sgpr %d
  .amdhsa_accum_offset %d
  .amdhsa_group_segment_fixed_size 0
  .amdhsa_kernarg_size %d
  .amdhsa_user_sgpr_count 2
  .amdhsa_user_sgpr_kernarg_segment_ptr 1
  .amdhsa_system_sgpr_workgroup_id_x 1
  .amdhsa_float_denorm_mode_32 3
  .amdhsa_float_denorm_mode_16_64 3
.end_amdhsa_kernel
""" % (name, vgpr, sgpr, accum, kernarg)


def vr(b, n):
    return "v%d" % b if n == 1 else "v[%d:%d]" % (b, b + n - 1)


def ar(b, n):
    return "a%d" % b if n == 1 else "a[%d:%d]" % (b, b + n - 1)


def sr(b, n):
    return "s%d" % b if n == 1 else "s[%d:%d]" % (b, b + n - 1)


def interleave(main, fill, start=0, end=None):
    out = []
    n = len(main)
    if end is None:
        end = n
    span = max(end - start, 1)
    k = 0
    for i, m in enumerate(main):
        out.append(m)
        if i >= start:
            want = min(len(fill), ((i - start + 1) * len(fill) + span - 1) // span)
            while k < want:
                out.extend(fill[k])
                k += 1
    while k < len(fill):
        out.extend(fill[k])
        k += 1
    return out
```

```python
from asmlib import *

HEADER_SRC = "adaLN_cond__ssm_conv_h3__mixer_gmlp__prompt.s.ref"


def compose(gens):
    a = Asm()
    infos = [g(a) for g in gens]
    head = []
    for l in open(HEADER_SRC).read().splitlines():
        if not l.startswith(";"):
            break
        if "@launch" in l or "Override launch" in l or "grid=ceil" in l:
            continue
        head.append(l)
    for i in infos:
        head.append("; @launch kernel=%s grid=(%d,1,1) block=(%d,1,1) lds=%d" % (i["name"], i["grid"], i["block"], i["lds"]))
    out = "\n".join(head) + "\n"
    out += '.amdgcn_target "amdgcn-amd-amdhsa--gfx950"\n'
    out += a.text()
    seen = set()
    for i in infos:
        if i["name"] in seen:
            continue
        seen.add(i["name"])
        acc = i.get("accum", (i["vgpr"] + 3) // 4 * 4)
        out += descriptor(i["name"], i.get("total_vgpr", i["vgpr"]), i["sgpr"], acc)
    return out
```

```python
from asmlib import *
from layout import *

NCONV = 144
NMOD = 54
NPF = 58
HC = 4160
CH_LDS = 4 * HC + 4608
UOFF = 4 * HC


def gen_conv(a, name="a_kernel", stamp=False, unaligned_dma=True):
    a.kernel_begin(name)
    e = a.e
    done = a.newlabel("adone")
    lmod = a.newlabel("amod")
    lpf = a.newlabel("apf")
    e("s_cmp_ge_u32 s2, 256")
    e("s_cbranch_scc1 %s" % done)
    e("s_load_dwordx2 s[8:9], s[0:1], %d" % ARG["ws"])
    e("v_lshrrev_b32 v1, 6, v0")
    e("v_and_b32 v2, 63, v0")
    e("s_nop 0")
    e("v_readfirstlane_b32 s34, v1")
    e("s_cmp_ge_u32 s2, %d" % (NCONV + NMOD))
    e("s_cbranch_scc1 %s" % lpf)
    e("s_cmp_ge_u32 s2, %d" % NCONV)
    e("s_cbranch_scc1 %s" % lmod)
    e("s_load_dwordx4 s[4:7], s[0:1], %d" % ARG["k"])
    e("s_load_dwordx4 s[36:39], s[0:1], %d" % ARG["shift"])
    e("s_load_dwordx2 s[40:41], s[0:1], %d" % ARG["ssmD"])
    e("s_and_b32 s3, s2, 7")
    e("s_mul_i32 s3, s3, 18")
    e("s_lshr_b32 s10, s2, 3")
    e("s_add_u32 s32, s3, s10")
    e("s_lshl_b32 s33, s32, 2")
    e("s_add_u32 s33, s33, s34")
    e("s_waitcnt lgkmcnt(0)")
    a.srd(12, 4, NB_SD)
    a.srd(16, 6, NB_SD)
    e("s_lshl_b32 s3, s33, 12")
    e("s_add_u32 s20, s38, s3")
    e("s_addc_u32 s21, s39, 0")
    e("s_mov_b32 s22, 4096")
    e("s_mov_b32 s23, 0x00020000")
    a.srd(24, 8, NB_SD, WS_YT)
    e("s_lshl_b32 s3, s32, 5")
    e("s_add_u32 s36, s36, s3")
    e("s_addc_u32 s37, s37, 0")
    e("s_load_dwordx8 s[44:51], s[36:37], 0")
    e("s_lshr_b32 s3, s33, 1")
    e("s_lshl_b32 s3, s3, 2")
    e("s_add_u32 s40, s40, s3")
    e("s_addc_u32 s41, s41, 0")
    e("s_load_dword s52, s[40:41], 0")
    if stamp:
        a.srd(56, 8, 1 << 20, WS_TS)
        e("s_memtime s[60:61]")
        e("s_memrealtime s[66:67]")
    e("s_mov_b32 s3, 9216")
    e("v_mul_lo_u32 v3, v0, s3")
    e("s_lshl_b32 s10, s32, 3")
    e("v_add_u32 v3, s10, v3")
    e("v_add_u32 v4, 4608, v3")
    e("v_subrev_u32 v5, 3456, v3")
    KB, VB = 16, 40
    for r in range(3):
        e("buffer_load_dwordx2 %s, v5, s[12:15], 0 offen offset:%d" % (vr(KB + 2 * r, 2), 1152 * r))
    for r in range(8):
        e("buffer_load_dwordx2 %s, v%d, s[12:15], 0 offen offset:%d" % (vr(KB + 6 + 2 * r, 2), 3 + r // 4, 1152 * (r % 4)))
    for r in range(8):
        e("buffer_load_dwordx2 %s, v%d, s[16:19], 0 offen offset:%d" % (vr(VB + 2 * r, 2), 3 + r // 4, 1152 * (r % 4)))
    e("s_mul_i32 s42, s34, %d" % CH_LDS)
    e("v_lshlrev_b32 v6, 4, v2")
    e("v_lshrrev_b32 v7, 4, v2")
    e("v_and_b32 v8, 15, v2")
    e("v_add_u32 v9, v7, v8")
    e("v_lshlrev_b32 v9, 1, v9")
    e("v_subrev_u32 v9, 32, v9")
    e("buffer_load_ushort v10, v9, s[20:23], 0 offen")
    if unaligned_dma:
        for p in range(4):
            e("s_add_u32 m0, s42, %d" % (p * HC + 32))
            if p:
                e("v_add_u32 v6, 2, v6")
            else:
                e("s_nop 0")
            for n in range(4):
                e("buffer_load_dwordx4 v6, s[20:23], 0 offen offset:%d lds" % (1024 * n))
    e("v_mul_u32_u24 v11, %d, v7" % HC)
    e("v_lshl_add_u32 v11, v8, 1, v11")
    e("v_add_u32 v11, s42, v11")
    e("v_mov_b32 v12, 0")
    e("v_mov_b32 v13, 0")
    e("v_lshlrev_b32 v14, 3, v2")
    e("v_add_u32 v14, s42, v14")
    e("ds_write_b64 v14, v[12:13] offset:%d" % (UOFF + 4096))
    e("s_waitcnt lgkmcnt(0)")
    for c in range(4):
        e("s_lshl_b32 s%d, s%d, 16" % (72 + 4 * c, 44 + 2 * c))
        e("s_and_b32 s%d, s%d, 0xffff0000" % (73 + 4 * c, 44 + 2 * c))
        e("s_lshl_b32 s%d, s%d, 16" % (74 + 4 * c, 45 + 2 * c))
        e("s_and_b32 s%d, s%d, 0xffff0000" % (75 + 4 * c, 45 + 2 * c))
    e("s_lshl_b32 s3, s52, 16")
    e("s_and_b32 s52, s52, 0xffff0000")
    e("s_bitcmp1_b32 s33, 0")
    e("s_cselect_b32 s52, s52, s3")
    nrest = 17 if unaligned_dma else 1
    e("s_waitcnt vmcnt(%d)" % nrest)
    e("v_lshlrev_b32 v15, 4, v0")
    e("v_sub_u32 v15, %d, v15" % (UOFF + 4080))
    KF, T = 64, 80
    for c in range(4):
        for r in range(11):
            src = KB + 2 * r + (c >> 1)
            if c & 1:
                e("v_and_b32 v%d, 0xffff0000, v%d" % (KF + r, src))
            else:
                e("v_lshlrev_b32 v%d, 16, v%d" % (KF + r, src))
        for r in range(8):
            e("v_mul_f32 v%d, s%d, v%d" % (T + r, 72 + 4 * c + 3, KF + r))
        for j in (2, 1, 0):
            for r in range(8):
                e("v_fmac_f32 v%d, s%d, v%d" % (T + r, 72 + 4 * c + j, KF + 3 + r - j))
        for r in range(8):
            src = VB + 2 * r + (c >> 1)
            if c & 1:
                e("v_and_b32 v%d, 0xffff0000, v%d" % (KF + r, src))
            else:
                e("v_lshlrev_b32 v%d, 16, v%d" % (KF + r, src))
        for r in range(8):
            e("v_mul_f32 v%d, v%d, v%d" % (T + r, T + r, KF + r))
        P = 88 + 4 * c
        for q in range(4):
            e("v_cvt_pk_bf16_f32 v%d, v%d, v%d" % (P + q, T + 7 - 2 * q, T + 6 - 2 * q))
        e("ds_write_b128 v15, %s offset:%d" % (vr(P, 4), c * CH_LDS))
    e("s_waitcnt vmcnt(%d)" % (nrest - 1))
    e("ds_write_b16 v11, v10")
    e("v_add_u32 v3, 1, v8")
    e("v_and_b32 v4, 3, v3")
    e("v_and_b32 v3, 0x1c, v3")
    e("v_lshl_add_u32 v3, v7, 3, v3")
    e("v_lshlrev_b32 v3, 1, v3")
    e("v_mul_u32_u24 v4, %d, v4" % HC)
    e("v_add3_u32 v3, v3, v4, s42")
    e("v_lshlrev_b32 v4, 5, v8")
    e("v_sub_u32 v4, %d, v4" % (UOFF + 480))
    e("v_lshl_add_u32 v4, v7, 4, v4")
    e("v_add_u32 v4, s42, v4")
    ACC = 16
    for r in range(32):
        e("v_mov_b32 v%d, 0" % (ACC + r))
    e("s_waitcnt vmcnt(0) lgkmcnt(0)")
    e("s_barrier")
    if stamp:
        e("s_memtime s[62:63]")
    FA = [64, 128]

    def reads(r):
        b = FA[r & 1]
        g = []
        for t in range(8):
            off = 64 * (r + 8 * t)
            g.append(["ds_read_b64 %s, v3 offset:%d" % (vr(b + 4 * t, 2), off)])
            g.append(["ds_read_b64 %s, v3 offset:%d" % (vr(b + 4 * t + 2, 2), off + 8)])
            g.append(["ds_read_b128 %s, v4 offset:%d" % (vr(b + 32 + 4 * t, 4), 2 * (1792 - 256 * t + 32 * r))])
        return g

    def mf(r):
        b = FA[r & 1]
        m = []
        for t in range(8):
            for j in range(t, 8):
                acc = vr(ACC + 4 * j, 4)
                m.append("v_mfma_f32_16x16x32_bf16 %s, %s, %s, %s" % (acc, vr(b + 4 * t, 4), vr(b + 32 + 4 * (j - t), 4), acc))
        return m

    for g in reads(0):
        e(g[0])
    for r in range(8):
        e("s_waitcnt lgkmcnt(0)")
        if r < 7:
            fill = reads(r + 1)
        else:
            fill = [["v_lshlrev_b32 v5, 5, v8", "v_lshl_add_u32 v5, v7, 3, v5"],
                    ["v_sub_u32 v6, %d, v5" % (UOFF + 4088 - 3584), "v_add_u32 v6, s42, v6"]]
            for j in range(8):
                fill.append(["ds_read_b64 %s, v6 offset:%d" % (vr(64 + 2 * j, 2), 3584 - 512 * j)])
        for l in interleave(mf(r), fill, 0, 28):
            e(l)
    e("s_waitcnt lgkmcnt(0)")
    e("s_lshl_b32 s3, s33, 12")
    e("s_nop 7")
    for j in range(8):
        u = 64 + 2 * j
        acc = ACC + 4 * j
        e("v_and_b32 v9, 0xffff0000, v%d" % (u + 1))
        e("v_lshlrev_b32 v10, 16, v%d" % (u + 1))
        e("v_and_b32 v11, 0xffff0000, v%d" % u)
        e("v_lshlrev_b32 v12, 16, v%d" % u)
        for rr in range(4):
            e("v_fmac_f32 v%d, s52, v%d" % (acc + rr, 9 + rr))
        e("v_cvt_pk_bf16_f32 v%d, v%d, v%d" % (u, acc, acc + 1))
        e("v_cvt_pk_bf16_f32 v%d, v%d, v%d" % (u + 1, acc + 2, acc + 3))
        e("buffer_store_dwordx2 %s, v5, s[24:27], s3 offen offset:%d" % (vr(u, 2), 512 * j))
    if stamp:
        stamp_out(a)
    e("s_endpgm")

    a.label(lmod)
    e("s_load_dwordx4 s[4:7], s[0:1], %d" % ARG["c"])
    e("s_sub_u32 s32, s2, %d" % NCONV)
    e("s_waitcnt lgkmcnt(0)")
    a.srd(12, 4, D * 2)
    a.srd(16, 6, D * 3456 * 2)
    a.srd(20, 8, 3456 * 4, WS_MOD)
    e("v_lshrrev_b32 v3, 3, v0")
    e("v_and_b32 v4, 7, v0")
    e("v_mul_u32_u24 v5, 6912, v3")
    e("v_lshl_add_u32 v5, v4, 4, v5")
    e("s_lshl_b32 s3, s32, 7")
    e("v_lshlrev_b32 v6, 1, v3")
    for m in range(18):
        e("buffer_load_ushort v%d, v6, s[12:15], 0 offen offset:%d" % (16 + m, 64 * m))
    for m in range(18):
        e("buffer_load_dwordx4 %s, v5, s[16:19], s3 offen" % vr(40 + 4 * m, 4))
        if m < 17:
            e("s_add_u32 s3, s3, %d" % (32 * 6912))
    e("s_waitcnt vmcnt(18)")
    e("s_mov_b32 s10, 0xbfb8aa3b")
    for m in range(18):
        e("v_lshlrev_b32 v%d, 16, v%d" % (16 + m, 16 + m))
        e("v_mul_f32 v7, s10, v%d" % (16 + m))
        e("v_exp_f32 v7, v7")
        e("s_nop 0")
        e("v_add_f32 v7, 1.0, v7")
        e("v_rcp_f32 v7, v7")
        e("s_nop 0")
        e("v_mul_f32 v7, v7, v%d" % (16 + m))
        e("v_cvt_pk_bf16_f32 v7, v7, v7")
        e("v_lshlrev_b32 v%d, 16, v7" % (16 + m))
    for q in range(8):
        e("v_mov_b32 v%d, 0" % (8 + q))
    for m in range(18):
        e("s_waitcnt vmcnt(%d)" % (17 - m))
        for q in range(4):
            e("v_lshlrev_b32 v34, 16, v%d" % (40 + 4 * m + q))
            e("v_and_b32 v35, 0xffff0000, v%d" % (40 + 4 * m + q))
            e("v_fmac_f32 v%d, v34, v%d" % (8 + 2 * q, 16 + m))
            e("v_fmac_f32 v%d, v35, v%d" % (9 + 2 * q, 16 + m))
    e("v_lshlrev_b32 v5, 5, v0")
    e("ds_write_b128 v5, v[8:11]")
    e("ds_write_b128 v5, v[12:15] offset:16")
    e("s_waitcnt lgkmcnt(0)")
    e("s_barrier")
    e("s_cmp_lg_u32 s34, 0")
    e("s_cbranch_scc1 %s" % done)
    e("v_lshlrev_b32 v5, 2, v0")
    for h in range(2):
        for q in range(16):
            e("ds_read_b32 v%d, v5 offset:%d" % (16 + 16 * h + q, 256 * (16 * h + q)))
        e("s_waitcnt lgkmcnt(0)")
    for step in (16, 8, 4, 2, 1):
        for q in range(step):
            e("v_add_f32 v%d, v%d, v%d" % (16 + q, 16 + q, 16 + q + step))
    e("v_cvt_pk_bf16_f32 v16, v16, v16")
    e("v_lshlrev_b32 v16, 16, v16")
    e("s_lshl_b32 s3, s32, 8")
    e("buffer_store_dword v16, v5, s[20:23], s3 offen")
    e("s_endpgm")

    a.label(lpf)
    e("s_load_dwordx2 s[4:5], s[0:1], %d" % ARG["win"])
    e("s_load_dwordx2 s[6:7], s[0:1], %d" % ARG["q"])
    e("s_sub_u32 s32, s2, %d" % (NCONV + NMOD))
    e("s_waitcnt lgkmcnt(0)")
    a.srd(12, 4, D * F * 2)
    a.srd(16, 6, NB_SD)
    a.srd(20, 8, 16 * S * 8, WS_STAT)
    e("s_lshl_b32 s3, s32, 8")
    e("v_add_u32 v3, s3, v0")
    e("v_lshlrev_b32 v4, 4, v3")
    for q in range(4):
        e("v_mov_b32 v%d, -1" % (8 + q))
    e("buffer_store_dwordx4 v[8:11], v4, s[20:23], 0 offen")
    e("s_mov_b32 s3, %d" % (NPF * 256 * 16))
    e("buffer_store_dwordx4 v[8:11], v4, s[20:23], s3 offen")
    e("v_lshlrev_b32 v4, 7, v3")
    e("s_mov_b32 s3, 0")
    for m in range(3):
        e("buffer_load_dword v%d, v4, s[12:15], s3 offen" % (12 + m))
        if m < 2:
            e("buffer_load_dword v%d, v4, s[16:19], s3 offen" % (16 + m))
            e("s_add_u32 s3, s3, %d" % (NPF * 256 * 128))
    e("s_waitcnt vmcnt(0)")
    a.label(done)
    e("s_endpgm")
    return dict(name=name, grid=256, block=256, lds=4 * CH_LDS, vgpr=192, sgpr=96)


def stamp_out(a, nw_shift=2):
    e = a.e
    e("s_waitcnt vmcnt(0) lgkmcnt(0)")
    e("s_memtime s[64:65]")
    e("s_memrealtime s[68:69]")
    e("s_waitcnt lgkmcnt(0)")
    e("s_sub_u32 s62, s62, s60")
    e("s_sub_u32 s64, s64, s60")
    e("v_mov_b32 v2, s62")
    e("v_mov_b32 v3, s64")
    e("v_mov_b32 v4, s66")
    e("v_mov_b32 v5, s68")
    e("s_lshl_b32 s3, s2, %d" % nw_shift)
    e("s_add_u32 s3, s3, s34")
    e("s_lshl_b32 s3, s3, 4")
    e("v_mov_b32 v1, 0")
    e("buffer_store_dwordx4 v[2:5], v1, s[56:59], s3 offen")
```

```python
from asmlib import *
from layout import *
from k_conv import stamp_out

STAGE = 36864


def gelu_pair(e, x, t, C0, C1):
    X, T = vr(x, 2), vr(t, 2)
    e("v_pk_mul_f32 %s, %s, %s" % (T, X, X))
    e("v_pk_fma_f32 %s, %s, %s, %s" % (T, T, C1, C0))
    e("v_pk_mul_f32 %s, %s, %s" % (T, T, X))
    e("v_exp_f32 v%d, v%d" % (t, t))
    e("v_exp_f32 v%d, v%d" % (t + 1, t + 1))
    e("s_nop 0")
    e("v_pk_add_f32 %s, %s, 1.0 op_sel_hi:[1,0]" % (T, T))
    e("v_rcp_f32 v%d, v%d" % (t, t))
    e("v_rcp_f32 v%d, v%d" % (t + 1, t + 1))
    e("s_nop 0")
    e("v_pk_mul_f32 %s, %s, %s" % (X, X, T))


def gelu_quad(e, x, t, c0, c1):
    P = [(vr(x, 2), vr(t, 2)), (vr(x + 2, 2), vr(t + 2, 2))]
    for X, T in P:
        e("v_pk_mul_f32 %s, %s, %s" % (T, X, X))
    for X, T in P:
        e("v_pk_fma_f32 %s, %s, %s, %s" % (T, T, c1, c0))
    for X, T in P:
        e("v_pk_mul_f32 %s, %s, %s" % (T, T, X))
    for q in range(4):
        e("v_exp_f32 v%d, v%d" % (t + q, t + q))
    e("v_pk_add_f32 %s, %s, 1.0 op_sel_hi:[1,0]" % (P[0][1], P[0][1]))
    e("v_pk_add_f32 %s, %s, 1.0 op_sel_hi:[1,0]" % (P[1][1], P[1][1]))
    for q in range(4):
        e("v_rcp_f32 v%d, v%d" % (t + q, t + q))
    for X, T in P:
        e("v_pk_mul_f32 %s, %s, %s" % (X, X, T))


def tile_map(a, xcdmap=True):
    e = a.e
    if xcdmap:
        e("s_and_b32 s3, s2, 7")
        e("s_lshr_b32 s10, s2, 3")
        e("s_and_b32 s32, s3, 1")
        e("s_lshl_b32 s32, s32, 3")
        e("s_and_b32 s11, s10, 7")
        e("s_add_u32 s32, s32, s11")
        e("s_lshr_b32 s33, s3, 1")
        e("s_lshl_b32 s33, s33, 2")
        e("s_lshr_b32 s11, s10, 3")
        e("s_add_u32 s33, s33, s11")
    else:
        e("s_lshr_b32 s32, s2, 4")
        e("s_and_b32 s33, s2, 15")


def gen_gemm1(a, name="g1_kernel", stamp=False, rd_end=14, prefetch=True):
    a.kernel_begin(name)
    e = a.e
    done = a.newlabel("g1done")
    e("s_cmp_ge_u32 s2, 256")
    e("s_cbranch_scc1 %s" % done)
    e("s_load_dwordx4 s[4:7], s[0:1], %d" % ARG["win"])
    e("s_load_dwordx2 s[8:9], s[0:1], %d" % ARG["ws"])
    e("s_load_dwordx2 s[70:71], s[0:1], %d" % ARG["wout"])
    tile_map(a)
    e("v_lshrrev_b32 v1, 6, v0")
    e("v_and_b32 v2, 63, v0")
    e("s_nop 0")
    e("v_readfirstlane_b32 s34, v1")
    e("s_waitcnt lgkmcnt(0)")
    a.srd(12, 4, D * F * 2)
    a.srd(16, 8, NB_SD, WS_H2)
    a.srd(20, 8, NB_SF, WS_Z1)
    a.srd(24, 8, NB_SF, WS_Z2)
    a.srd(28, 8, 16 * S * 8, WS_STAT)
    a.srd(72, 6, S * S * 2)
    a.srd(76, 70, FH * D * 2)
    if stamp:
        a.srd(56, 8, 1 << 20, WS_TS)
        e("s_memtime s[60:61]")
        e("s_memrealtime s[66:67]")
    e("v_lshlrev_b32 v3, 4, v2")
    DV = 8
    e("s_mov_b32 s3, 3641")
    for n in range(9):
        e("v_add_u32 v4, %d, v2" % (64 * n))
        e("v_mul_u32_u24 v5, s3, v4")
        e("v_lshrrev_b32 v5, 16, v5")
        e("v_mul_u32_u24 v6, 18, v5")
        e("v_sub_u32 v4, v4, v6")
        e("v_bfe_u32 v6, v5, 2, 2")
        e("v_lshlrev_b32 v6, 3, v6")
        e("v_and_b32 v7, 3, v5")
        e("v_add_u32 v6, v6, v7")
        e("v_lshrrev_b32 v7, 4, v5")
        e("v_lshl_add_u32 v6, v7, 2, v6")
        e("v_mul_u32_u24 v6, 9216, v6")
        e("v_lshl_add_u32 v6, v4, 4, v6")
        if n % 4:
            e("v_subrev_u32 v%d, %d, v6" % (DV + n, 1024 * (n % 4)))
        else:
            e("v_mov_b32 v%d, v6" % (DV + n))
    e("s_lshr_b32 s3, s34, 1")
    e("s_mul_i32 s35, s3, %d" % (32 * 9216))
    e("s_and_b32 s3, s34, 1")
    e("s_xor_b32 s3, s3, 1")
    e("s_mul_i32 s3, s3, 4608")
    e("s_add_u32 s35, s35, s3")
    e("s_mul_i32 s3, s33, 288")
    e("s_add_u32 s35, s35, s3")
    e("s_mul_i32 s38, s34, 9216")

    def dma(slot):
        g = []
        for n in range(9):
            x = []
            if n % 4 == 0:
                x.append("s_add_u32 m0, s38, 0x%x" % (slot * STAGE + 1024 * n))
                x.append("s_nop 0")
            x.append("buffer_load_dwordx4 v%d, s[12:15], s35 offen offset:%d lds" % (DV + n, 1024 * (n % 4)))
            g.append(x)
        g[-1].append("s_add_u32 s35, s35, %d" % (64 * 9216))
        return g

    for g in dma(0):
        for l in g:
            e(l)
    e("s_lshl_b32 s3, s32, 2")
    e("s_add_u32 s36, s3, s34")
    e("s_mul_i32 s3, s36, %d" % (18 * 2048))
    for f in range(36):
        if f and f % 4 == 0:
            e("s_add_u32 s3, s3, 4096")
        e("buffer_load_dwordx4 %s, v3, s[16:19], s3 offen offset:%d" % (ar(4 * f, 4), 1024 * (f % 4)))
        if f == 3:
            for g in dma(1):
                for l in g:
                    e(l)
    e("v_lshrrev_b32 v4, 2, v2")
    e("v_mul_u32_u24 v4, 288, v4")
    e("v_and_b32 v5, 3, v2")
    e("v_lshl_add_u32 v4, v5, 3, v4")
    for s in range(4):
        e("v_add_u32 v%d, 0x%x, v4" % (20 + s, s * STAGE))
    ACC2, ACC1 = 32, 104
    WF = [176, 212]
    for r in range(144):
        e("v_mov_b32 v%d, 0" % (32 + r))

    def reads(slot, ph):
        b = WF[ph & 1]
        g = []
        for ft in range(9):
            for hh in range(2):
                g.append(["ds_read_b64_tr_b16 %s, v%d offset:%d" % (vr(b + 4 * ft + 2 * hh, 2), 20 + slot, ph * 9216 + hh * 4608 + ft * 32)])
        return g

    def mf(c, ph):
        kk, seg = ph >> 1, ph & 1
        b = WF[ph & 1]
        m = []
        for ft in range(9):
            for tau in range(2):
                h = ar(4 * ((2 * c + kk) * 2 + tau), 4)
                w = vr(b + 4 * ft, 4)
                if seg == 0:
                    acc = vr(ACC2 + 8 * ft + 4 * tau, 4)
                    m.append("v_mfma_f32_16x16x32_bf16 %s, %s, %s, %s" % (acc, h, w, acc))
                else:
                    acc = vr(ACC1 + 8 * ft + 4 * tau, 4)
                    m.append("v_mfma_f32_16x16x32_bf16 %s, %s, %s, %s" % (acc, w, h, acc))
        return m

    def spread(m, fill):
        out, k, nm = [], 0, 0
        for l in m:
            out.append(l)
            if l.startswith("v_mfma"):
                nm += 1
                want = min(len(fill), (nm * len(fill) + 9) // 18)
                while k < want:
                    out.extend(fill[k])
                    k += 1
        while k < len(fill):
            out.extend(fill[k])
            k += 1
        return out

    e("s_waitcnt vmcnt(41)")
    e("s_barrier")
    for g in reads(0, 0):
        e(g[0])
    issued = [9 + 4 + 9 + 32]
    stage_end = {0: 9, 1: 22}
    h_end = 54
    for c in range(9):
        todo = []
        if c == 0:
            todo += [(2, g) for g in dma(2)]
        if c + 3 < 9:
            todo += [(c + 3, g) for g in dma((c + 3) % 4)]
        parts = [todo[len(todo) * i // 3: len(todo) * (i + 1) // 3] for i in range(3)]
        for ph in range(4):
            if ph == 3 and c < 8:
                need = stage_end[c + 1]
                if c == 0:
                    need = max(need, h_end)
                e("s_waitcnt vmcnt(%d) lgkmcnt(0)" % min(63, issued[0] - need))
                e("s_barrier")
            else:
                e("s_waitcnt lgkmcnt(0)")
            if ph < 3:
                rd = reads(c % 4, ph + 1)
            elif c < 8:
                rd = reads((c + 1) % 4, 0)
            else:
                rd = []
            fill = []
            if ph < 3:
                for st, g in parts[ph]:
                    fill.append(g)
                    issued[0] += 1
                    stage_end[st] = issued[0]
            for l in spread(interleave(mf(c, ph), rd, 0, rd_end), fill):
                e(l)
    if stamp:
        e("s_memtime s[62:63]")
    if prefetch:
        e("s_lshl_b32 s3, s2, 8")
        e("v_add_u32 v4, s3, v0")
        e("v_lshlrev_b32 v4, 7, v4")
        e("buffer_load_dword v17, v4, s[72:75], 0 offen")
        e("buffer_load_dword v18, v4, s[76:79], 0 offen")
    e("v_mov_b32 v24, 0xc0135761")
    e("v_mov_b32 v25, 0xc0135761")
    e("v_mov_b32 v26, 0xbdd2d3e8")
    e("v_mov_b32 v27, 0xbdd2d3e8")
    T = 176
    SUM, SQ = 184, 192
    for ft in range(9):
        for tau in range(2):
            x = ACC2 + 8 * ft + 4 * tau
            gelu_quad(e, x, T + 4 * tau, "v[24:25]", "v[26:27]")
            for q in (0, 2):
                s_, q_ = vr(SUM + 4 * tau + q, 2), vr(SQ + 4 * tau + q, 2)
                if ft == 0:
                    e("v_pk_mul_f32 %s, %s, %s" % (q_, vr(x + q, 2), vr(x + q, 2)))
                else:
                    e("v_pk_fma_f32 %s, %s, %s, %s" % (q_, vr(x + q, 2), vr(x + q, 2), q_))
                if ft == 1:
                    e("v_pk_add_f32 %s, %s, %s" % (s_, vr(x + q, 2), vr(x + q - 8, 2)))
                elif ft > 1:
                    e("v_pk_add_f32 %s, %s, %s" % (s_, vr(x + q, 2), s_))
    e("s_nop 1")
    for rot in (8, 4, 2, 1):
        for q in range(16):
            e("v_add_f32_dpp v%d, v%d, v%d row_ror:%d row_mask:0xf bank_mask:0xf" % (SUM + q, SUM + q, SUM + q, rot))
    G = 200
    for q in range(8):
        e("v_min_u32 v%d, -2, v%d" % (G + 2 * q, SUM + q))
        e("v_min_u32 v%d, -2, v%d" % (G + 2 * q + 1, SQ + q))
    e("v_lshrrev_b32 v4, 4, v2")
    e("v_lshlrev_b32 v4, 6, v4")
    e("s_lshl_b32 s37, s36, 8")
    e("s_lshl_b32 s3, s33, 14")
    e("s_add_u32 s3, s3, s37")
    e("s_mov_b32 s40, 0x00010001")
    e("s_mov_b32 s41, 0x00010001")
    e("s_mov_b64 exec, s[40:41]")
    for q in range(4):
        e("buffer_store_dwordx4 %s, v4, s[28:31], s3 offen offset:%d sc1" % (vr(G + 4 * q, 4), 16 * q))
    e("s_mov_b64 exec, -1")
    e("s_lshl_b32 s3, s32, 4")
    e("s_add_u32 s3, s3, s33")
    e("s_lshl_b32 s3, s3, 2")
    e("s_add_u32 s3, s3, s34")
    e("s_mul_i32 s3, s3, 9216")
    for ft in range(9):
        for tau in range(2):
            gelu_quad(e, ACC1 + 8 * ft + 4 * tau, T + 4 * tau, "v[24:25]", "v[26:27]")
        x = ACC1 + 8 * ft
        o = 216 + 4 * (ft % 4)
        for q in range(4):
            e("v_cvt_pk_bf16_f32 v%d, v%d, v%d" % (o + q, x + 2 * q, x + 2 * q + 1))
        if ft and ft % 4 == 0:
            e("s_add_u32 s3, s3, 4096")
        e("buffer_store_dwordx4 %s, v3, s[20:23], s3 offen offset:%d" % (vr(o, 4), 1024 * (ft % 4)))
    e("v_and_b32 v5, 15, v2")
    e("v_lshl_add_u32 v4, v5, 14, v4")
    e("s_mov_b32 s39, 0x4000")
    poll = a.newlabel("g1poll")
    got = a.newlabel("g1got")
    a.label(poll)
    for q in range(4):
        e("buffer_load_dwordx4 %s, v4, s[28:31], s37 offen offset:%d sc1" % (vr(G + 4 * q, 4), 16 * q))
    e("s_waitcnt vmcnt(0)")
    e("v_max_u32 v5, v%d, v%d" % (G, G + 1))
    for q in range(2, 16, 2):
        e("v_max3_u32 v5, v%d, v%d, v5" % (G + q, G + q + 1))
    e("v_cmp_eq_u32 vcc, -1, v5")
    e("s_cbranch_vccz %s" % got)
    e("s_sub_u32 s39, s39, 1")
    e("s_cmp_eq_u32 s39, 0")
    e("s_cbranch_scc1 %s" % got)
    e("s_sleep 2")
    e("s_branch %s" % poll)
    a.label(got)
    for rot in (8, 4, 2, 1):
        for q in range(16):
            e("v_add_f32_dpp v%d, v%d, v%d row_ror:%d row_mask:0xf bank_mask:0xf" % (G + q, G + q, G + q, rot))
    e("s_mov_b32 s40, 0x39e38e39")
    e("s_mov_b32 s41, 0x3727c5ac")
    for q in range(8):
        m_, v_ = G + 2 * q, G + 2 * q + 1
        e("v_mul_f32 v%d, s40, v%d" % (m_, m_))
        e("v_mul_f32 v%d, s40, v%d" % (v_, v_))
        e("v_fma_f32 v%d, -v%d, v%d, v%d" % (v_, m_, m_, v_))
        e("v_max_f32 v%d, 0, v%d" % (v_, v_))
        e("v_add_f32 v%d, s41, v%d" % (v_, v_))
        e("v_rsq_f32 v%d, v%d" % (SUM + q, v_))
    e("s_nop 0")
    for q in range(8):
        e("v_mul_f32 v%d, v%d, v%d" % (SQ + q, G + 2 * q, SUM + q))
    e("s_lshl_b32 s3, s33, 6")
    e("s_add_u32 s3, s3, s36")
    e("s_mul_i32 s3, s3, 9216")
    for ft in range(9):
        x = ACC2 + 8 * ft
        for q in range(0, 8, 2):
            e("v_pk_fma_f32 %s, %s, %s, %s neg_lo:[0,0,1] neg_hi:[0,0,1]" % (vr(x + q, 2), vr(x + q, 2), vr(SUM + q, 2), vr(SQ + q, 2)))
        o = 232 + 4 * (ft % 4)
        for q in range(4):
            e("v_cvt_pk_bf16_f32 v%d, v%d, v%d" % (o + q, x + 2 * q, x + 2 * q + 1))
        if ft and ft % 4 == 0:
            e("s_add_u32 s3, s3, 4096")
        e("buffer_store_dwordx4 %s, v3, s[24:27], s3 offen offset:%d" % (vr(o, 4), 1024 * (ft % 4)))
    if stamp:
        stamp_out(a)
    a.label(done)
    e("s_endpgm")
    return dict(name=name, grid=256, block=256, lds=4 * STAGE, vgpr=248, accum=248, total_vgpr=248 + 144, sgpr=96)
```

```python
from asmlib import *
from layout import *

STAGE = 34816
ZB = 18432


def gen_gemm2(a, name="g2_kernel", no_mfma=False, no_ds=False, no_dma=False, no_bar=False, reps=1,
              rd_end=13, xcdmap=True, stamp=False, wrap=False, vmx=1, no_w=False, no_z=False, dphase=9, ds_once=False, dma_once=False, dma_vgpr=False):
    a.kernel_begin(name)
    e = a.e
    done = a.newlabel("g2done")
    e("s_cmp_ge_u32 s2, 256")
    e("s_cbranch_scc1 %s" % done)
    e("s_load_dwordx4 s[4:7], s[0:1], %d" % ARG["wsp"])
    e("s_load_dwordx2 s[8:9], s[0:1], %d" % ARG["ws"])
    if xcdmap:
        e("s_and_b32 s3, s2, 7")
        e("s_lshr_b32 s10, s2, 3")
        e("s_and_b32 s32, s3, 1")
        e("s_lshl_b32 s32, s32, 3")
        e("s_and_b32 s11, s10, 7")
        e("s_add_u32 s32, s32, s11")
        e("s_lshr_b32 s33, s3, 1")
        e("s_lshl_b32 s33, s33, 2")
        e("s_lshr_b32 s11, s10, 3")
        e("s_add_u32 s33, s33, s11")
    else:
        e("s_lshr_b32 s32, s2, 4")
        e("s_and_b32 s33, s2, 15")
    e("v_lshrrev_b32 v1, 6, v0")
    e("v_and_b32 v2, 63, v0")
    e("s_nop 0")
    e("v_readfirstlane_b32 s34, v1")
    e("s_waitcnt lgkmcnt(0)")
    a.srd(12, 4, S * S * 2)
    a.srd(16, 8, NB_SF, WS_Z2)
    a.srd(20, 8, NB_SF, WS_Z1)
    a.srd(24, 8, NB_SF, WS_U)
    a.srd(28, 6, S * 2)
    if stamp:
        a.srd(56, 8, 1 << 20, WS_TS)
        e("s_memtime s[60:61]")
        e("s_memrealtime s[66:67]")
    e("v_lshlrev_b32 v24, 4, v2")
    e("v_add_u32 v25, 0x1000, v24")
    for s in range(4):
        e("v_add_u32 v%d, 0x%x, v24" % (8 + s, s * STAGE))
    e("v_and_b32 v3, 15, v2")
    e("v_lshrrev_b32 v4, 4, v2")
    e("v_lshrrev_b32 v5, 1, v3")
    e("v_xor_b32 v5, v5, v4")
    e("v_lshlrev_b32 v5, 4, v5")
    e("v_lshl_add_u32 v5, v3, 7, v5")
    e("s_lshl_b32 s3, s34, 12")
    e("v_add_u32 v5, s3, v5")
    for s in range(4):
        e("v_add_u32 v%d, 0x%x, v5" % (12 + s, s * STAGE + ZB))
        e("v_xor_b32 v%d, 64, v%d" % (16 + s, 12 + s))
    e("s_lshl_b32 s3, s32, 7")
    e("s_lshl_b32 s10, s34, 5")
    e("s_add_u32 s3, s3, s10")
    e("v_lshrrev_b32 v6, 3, v2")
    e("v_and_b32 v7, 7, v2")
    for n in range(4):
        tau = n >> 1
        e("v_lshrrev_b32 v1, 5, v2")
        e("v_lshlrev_b32 v1, 3, v1")
        e("v_and_b32 v5, 3, v6")
        e("v_add_u32 v1, v1, v5")
        e("v_add_u32 v1, %d, v1" % (16 * (n & 1) + 4 * tau))
        e("v_add_u32 v1, s3, v1")
        e("v_lshlrev_b32 v1, 12, v1")
        e("v_add_u32 v5, %d, v4" % (4 * n))
        e("v_and_b32 v5, 7, v5")
        e("v_xor_b32 v5, v5, v7")
        e("v_lshl_add_u32 v1, v5, 4, v1")
        if n:
            e("v_subrev_u32 v%d, %d, v1" % (20 + n, 1024 * n))
        else:
            e("v_mov_b32 v20, v1")
    e("v_lshrrev_b32 v1, 2, v3")
    e("v_lshlrev_b32 v1, 3, v1")
    e("v_and_b32 v5, 3, v3")
    e("v_add_u32 v1, v1, v5")
    e("v_add_u32 v1, s3, v1")
    e("v_lshlrev_b32 v1, 1, v1")
    e("buffer_load_ushort v26, v1, s[28:31], 0 offen")
    e("buffer_load_ushort v27, v1, s[28:31], 0 offen offset:8")
    e("s_lshl_b32 s3, s32, 4")
    e("s_add_u32 s3, s3, s33")
    e("s_lshl_b32 s3, s3, 2")
    e("s_add_u32 s3, s3, s34")
    e("s_mul_i32 s3, s3, 9216")
    for ft in range(9):
        if ft and ft % 4 == 0:
            e("s_add_u32 s3, s3, 4096")
        e("buffer_load_dwordx4 %s, v24, s[20:23], s3 offen offset:%d" % (vr(28 + 4 * ft, 4), (ft % 4) * 1024))
    e("s_mul_i32 s38, s34, 5")
    e("s_min_u32 s38, s38, 14")
    e("s_lshl_b32 s38, s38, 10")
    e("s_mul_i32 s39, s33, %d" % (64 * 9216))
    e("s_add_u32 s39, s39, s38")
    for s in range(4):
        e("s_add_u32 s%d, s38, 0x%x" % (40 + s, s * STAGE))
        e("s_lshl_b32 s3, s34, 12")
        e("s_add_u32 s%d, s3, 0x%x" % (44 + s, s * STAGE + ZB))
    e("s_mov_b32 s50, %d" % reps)
    rep = a.newlabel("g2rep")
    a.label(rep)
    for r in range(72):
        e("v_mov_b32 v%d, 0" % (64 + r))

    def dma(stage, nz, first=False):
        if no_dma or (dma_once and not first):
            return []
        g = []
        g.append(["s_mov_b32 m0, s%d" % (40 + stage), "s_nop 0",
                  "buffer_load_dwordx4 v24, s[16:19], s36 offen lds"])
        for p in range(1, 4):
            g.append(["buffer_load_dwordx4 v24, s[16:19], s36 offen offset:%d lds" % (1024 * p)])
        if nz == 5:
            g.append(["s_add_u32 m0, s%d, 0x1000" % (40 + stage), "s_nop 0",
                      "buffer_load_dwordx4 v25, s[16:19], s36 offen lds"])
        g.append(["s_mov_b32 m0, s%d" % (44 + stage), "s_add_u32 s36, s36, %d" % ZB,
                  "buffer_load_dwordx4 v20, s[12:15], s35 offen lds"])
        for p in range(1, 4):
            g.append(["buffer_load_dwordx4 v%d, s[12:15], s35 offen offset:%d lds" % (20 + p, 1024 * p)])
        g[-1].append("s_add_u32 s35, s35, 128")
        if dma_vgpr and not first:
            cnt = [0]
            def conv(l):
                if not l.startswith("buffer_load"):
                    return l
                cnt[0] += 1
                return l.replace(" lds", "").replace("buffer_load_dwordx4 ", "buffer_load_dwordx4 %s, " % vr(224 + 4 * (cnt[0] % 8), 4))
            g = [[conv(l) for l in x] for x in g]
        if no_w:
            g = [[l.replace("s[12:15], s35", "s[16:19], s36").replace("v20", "v24").replace("v21", "v24").replace("v22", "v24").replace("v23", "v24") for l in x] for x in g]
        return g

    def reads(stage, kk, first=False):
        if no_ds or (ds_once and not first):
            return []
        base = 136 + 44 * kk
        g = []
        for tau in range(2):
            g.append(["ds_read_b128 %s, v%d offset:%d" % (vr(base + 4 * tau, 4), (12 if kk == 0 else 16) + stage, 2048 * tau)])
        for ft in range(9):
            g.append(["ds_read_b128 %s, v%d offset:%d" % (vr(base + 8 + 4 * ft, 4), 8 + stage, (kk * 9 + ft) * 1024)])
        return g

    def mfmas(kk):
        base = 136 + 44 * kk
        m = []
        for ft in range(9):
            for tau in range(2):
                acc = vr(64 + 8 * ft + 4 * tau, 4)
                if no_mfma:
                    m.append("s_nop 0")
                else:
                    m.append("v_mfma_f32_16x16x32_bf16 %s, %s, %s, %s" % (
                        acc, vr(base + 8 + 4 * ft, 4), vr(base + 4 * tau, 4), acc))
        return m

    def bar():
        if not no_bar:
            e("s_barrier")

    def spread(m, fill_d):
        out = []
        k = 0
        nm = 0
        for l in m:
            out.append(l)
            if l.startswith("v_mfma") or l.startswith("s_nop"):
                nm += 1
                want = min(len(fill_d), (nm * len(fill_d) + dphase) // 18)
                while k < want:
                    out.extend(fill_d[k])
                    k += 1
        while k < len(fill_d):
            out.extend(fill_d[k])
            k += 1
        return out

    def step(st, nz, dmaA, dmaB, vm, last=False):
        e("s_waitcnt lgkmcnt(0)")
        fa = dma((st + 3) % 4, nz)[nz:] if dmaA else []
        for l in spread(interleave(mfmas(0), reads(st, 1), 0, rd_end), fa):
            e(l)
        if not last:
            e("s_waitcnt vmcnt(%d) lgkmcnt(0)" % vm)
            bar()
            fb = dma(st, nz)[:nz] if dmaB else []
            for l in spread(interleave(mfmas(1), reads((st + 1) % 4, 0), 0, rd_end), fb):
                e(l)
        else:
            e("s_waitcnt lgkmcnt(0)")
            for l in mfmas(1):
                e(l)

    epi = a.newlabel("g2epi")
    l4 = a.newlabel("g2nz4")
    e("s_mov_b32 s35, 0")
    e("s_mov_b32 s36, s39")
    e("s_cmp_ge_u32 s34, 2")
    e("s_cbranch_scc1 %s" % l4)
    for nz in (5, 4):
        nd = nz + 4
        if nz == 4:
            a.label(l4)
        for st in range(3):
            for g in dma(st, nz, True):
                for l in g:
                    e(l)
        for g in dma(3, nz, True)[:nz]:
            for l in g:
                e(l)
        e("s_waitcnt vmcnt(%d)" % (2 * nd + nz))
        bar()
        for g in reads(0, 0, True) + (reads(0, 1, True) if ds_once else []):
            for l in g:
                e(l)
        e("s_mov_b32 s37, 7")
        loop = a.newlabel("g2loop")
        a.raw(".p2align 3")
        a.label(loop)
        if wrap:
            e("s_mov_b32 s35, 0")
            e("s_mov_b32 s36, s39")
        for st in range(4):
            step(st, nz, True, True, 2 * nd)
        e("s_sub_u32 s37, s37, 1")
        e("s_cmp_lg_u32 s37, 0")
        e("s_cbranch_scc1 %s" % loop)
        step(0, nz, True, False, 2 * nd)
        step(1, nz, False, False, nd)
        step(2, nz, False, False, 0)
        step(3, nz, False, False, 0, last=True)
        if nz == 5:
            e("s_branch %s" % epi)
    a.label(epi)
    if reps > 1:
        bar()
        e("s_sub_u32 s50, s50, 1")
        e("s_cmp_lg_u32 s50, 0")
        e("s_cbranch_scc1 %s" % rep)
    if stamp:
        e("s_memtime s[62:63]")
    e("s_nop 7")
    e("v_lshlrev_b32 v26, 16, v26")
    e("v_lshlrev_b32 v27, 16, v27")
    for ft in range(9):
        for tau in range(2):
            acc = 64 + 8 * ft + 4 * tau
            z = 28 + 4 * ft + 2 * tau
            for r in range(4):
                e("v_add_f32 v%d, v%d, v%d" % (acc + r, acc + r, 26 + tau))
            e("v_lshlrev_b32 v1, 16, v%d" % z)
            e("v_and_b32 v3, 0xffff0000, v%d" % z)
            e("v_lshlrev_b32 v4, 16, v%d" % (z + 1))
            e("v_and_b32 v5, 0xffff0000, v%d" % (z + 1))
            e("v_mul_f32 v%d, v%d, v1" % (acc, acc))
            e("v_mul_f32 v%d, v%d, v3" % (acc + 1, acc + 1))
            e("v_mul_f32 v%d, v%d, v4" % (acc + 2, acc + 2))
            e("v_mul_f32 v%d, v%d, v5" % (acc + 3, acc + 3))
            d = 136 + tau * 24 + 2 * ft
            e("v_cvt_pk_bf16_f32 v%d, v%d, v%d" % (d, acc, acc + 1))
            e("v_cvt_pk_bf16_f32 v%d, v%d, v%d" % (d + 1, acc + 2, acc + 3))
    e("s_lshl_b32 s3, s32, 2")
    e("s_add_u32 s3, s3, s34")
    e("s_mul_i32 s3, s3, 72")
    e("s_lshr_b32 s10, s33, 1")
    e("s_mul_i32 s10, s10, 9")
    e("s_add_u32 s3, s3, s10")
    e("s_lshl_b32 s3, s3, 11")
    odd = a.newlabel("g2odd")
    fin = a.newlabel("g2fin")
    e("s_bitcmp1_b32 s33, 0")
    e("s_cbranch_scc1 %s" % odd)
    for m in range(4):
        for tau in range(2):
            e("buffer_store_dwordx4 %s, v24, s[24:27], s3 offen offset:%d" % (vr(136 + tau * 24 + 4 * m, 4), (m % 2) * 2048 + tau * 1024))
        if m % 2 == 1:
            e("s_add_u32 s3, s3, 4096")
    for tau in range(2):
        e("buffer_store_dwordx2 %s, v24, s[24:27], s3 offen offset:%d" % (vr(136 + tau * 24 + 16, 2), tau * 1024))
    e("s_branch %s" % fin)
    a.label(odd)
    e("s_add_u32 s3, s3, %d" % (4 * 2048))
    for tau in range(2):
        e("buffer_store_dwordx2 %s, v24, s[24:27], s3 offen offset:%d" % (vr(136 + tau * 24, 2), tau * 1024 + 8))
    e("s_add_u32 s3, s3, 2048")
    for m in range(4):
        for tau in range(2):
            e("buffer_store_dwordx4 %s, v24, s[24:27], s3 offen offset:%d" % (vr(136 + tau * 24 + 2 + 4 * m, 4), (m % 2) * 2048 + tau * 1024))
        if m % 2 == 1:
            e("s_add_u32 s3, s3, 4096")
    a.label(fin)
    if stamp:
        e("s_waitcnt vmcnt(0) lgkmcnt(0)")
        e("s_memtime s[64:65]")
        e("s_memrealtime s[68:69]")
        e("s_waitcnt lgkmcnt(0)")
        e("s_sub_u32 s62, s62, s60")
        e("s_sub_u32 s64, s64, s60")
        e("v_mov_b32 v2, s62")
        e("v_mov_b32 v3, s64")
        e("v_mov_b32 v4, s66")
        e("v_mov_b32 v5, s68")
        e("s_lshl_b32 s3, s2, 2")
        e("s_add_u32 s3, s3, s34")
        e("s_lshl_b32 s3, s3, 4")
        e("v_mov_b32 v1, 0")
        e("buffer_store_dwordx4 v[2:5], v1, s[56:59], s3 offen")
    a.label(done)
    e("s_endpgm")
    return dict(name=name, grid=256, block=256, lds=4 * STAGE, vgpr=256 if dma_vgpr else 224, sgpr=72)
```

```python
from asmlib import *
from layout import *
from k_conv import stamp_out

SLOT = 9216
NSLOT = 4


def gen_gemm3(a, name="g3_kernel", stamp=False, rd_end=14):
    a.kernel_begin(name)
    e = a.e
    done = a.newlabel("g3done")
    e("s_cmp_ge_u32 s2, 256")
    e("s_cbranch_scc1 %s" % done)
    e("s_load_dwordx2 s[4:5], s[0:1], %d" % ARG["wout"])
    e("s_load_dwordx2 s[6:7], s[0:1], %d" % ARG["out"])
    e("s_load_dwordx2 s[8:9], s[0:1], %d" % ARG["ws"])
    e("s_and_b32 s3, s2, 7")
    e("s_lshr_b32 s10, s2, 3")
    e("s_lshl_b32 s32, s3, 3")
    e("s_lshr_b32 s11, s10, 2")
    e("s_add_u32 s32, s32, s11")
    e("s_and_b32 s33, s10, 3")
    e("v_lshrrev_b32 v1, 6, v0")
    e("v_and_b32 v2, 63, v0")
    e("s_nop 0")
    e("v_readfirstlane_b32 s34, v1")
    e("s_waitcnt lgkmcnt(0)")
    a.srd(12, 4, FH * D * 2)
    a.srd(16, 8, NB_SF, WS_U)
    a.srd(20, 8, NB_SD, WS_X1)
    a.srd(24, 6, NB_SD)
    a.srd(28, 8, 3456 * 4, WS_MOD)
    if stamp:
        a.srd(56, 8, 1 << 20, WS_TS)
        e("s_memtime s[60:61]")
        e("s_memrealtime s[66:67]")
    e("v_lshlrev_b32 v3, 4, v2")
    DV = 8
    e("s_mov_b32 s3, 3641")
    for n in range(9):
        e("v_add_u32 v4, %d, v2" % (64 * n))
        e("v_mul_u32_u24 v5, s3, v4")
        e("v_lshrrev_b32 v5, 16, v5")
        e("v_mul_u32_u24 v6, 18, v5")
        e("v_sub_u32 v4, v4, v6")
        e("v_mul_u32_u24 v6, 1152, v5")
        e("v_lshl_add_u32 v6, v4, 4, v6")
        if n % 4:
            e("v_subrev_u32 v%d, %d, v6" % (DV + n, 1024 * (n % 4)))
        else:
            e("v_mov_b32 v%d, v6" % (DV + n))
    e("s_mul_i32 s35, s34, %d" % (18 * 32 * 1152))
    e("s_mul_i32 s3, s33, 288")
    e("s_add_u32 s35, s35, s3")
    e("s_mul_i32 s38, s34, %d" % (NSLOT * SLOT))

    def dma(slot):
        g = []
        for n in range(9):
            x = []
            if n % 4 == 0:
                x.append("s_add_u32 m0, s38, 0x%x" % (slot * SLOT + 1024 * n))
                x.append("s_nop 0")
            x.append("buffer_load_dwordx4 v%d, s[12:15], s35 offen offset:%d lds" % (DV + n, 1024 * (n % 4)))
            g.append(x)
        g[-1].append("s_add_u32 s35, s35, %d" % (32 * 1152))
        return g

    e("s_mul_i32 s36, s32, 72")
    e("s_mul_i32 s3, s34, 18")
    e("s_add_u32 s36, s36, s3")
    e("s_lshl_b32 s36, s36, 11")

    def uload(c):
        g = []
        for tau in range(2):
            g.append(["buffer_load_dwordx4 %s, v3, s[16:19], s36 offen offset:%d" % (ar(8 * c + 4 * tau, 4), (c % 2) * 2048 + tau * 1024)])
        if c % 2:
            g[-1].append("s_add_u32 s36, s36, 4096")
        return g

    def stage(c):
        return uload(c) + dma(c % NSLOT)

    for c in range(3):
        for g in stage(c):
            for l in g:
                e(l)
    e("v_lshrrev_b32 v4, 2, v2")
    e("v_mul_u32_u24 v4, 288, v4")
    e("v_and_b32 v5, 3, v2")
    e("v_lshl_add_u32 v4, v5, 3, v4")
    e("v_add_u32 v20, s38, v4")
    ACC = 32
    WF = [104, 140]
    for r in range(72):
        e("v_mov_b32 v%d, 0" % (ACC + r))

    def reads(c):
        b = WF[c & 1]
        g = []
        for ft in range(9):
            for hh in range(2):
                g.append(["ds_read_b64_tr_b16 %s, v20 offset:%d" % (vr(b + 4 * ft + 2 * hh, 2), (c % NSLOT) * SLOT + hh * 4608 + ft * 32)])
        return g

    def mf(c):
        b = WF[c & 1]
        m = []
        for ft in range(9):
            for tau in range(2):
                acc = vr(ACC + 8 * ft + 4 * tau, 4)
                m.append("v_mfma_f32_16x16x32_bf16 %s, %s, %s, %s" % (acc, vr(b + 4 * ft, 4), ar(8 * c + 4 * tau, 4), acc))
        return m

    def spread(m, fill):
        out, k, nm = [], 0, 0
        for l in m:
            out.append(l)
            if l.startswith("v_mfma"):
                nm += 1
                want = min(len(fill), (nm * len(fill) + 9) // 18)
                while k < want:
                    out.extend(fill[k])
                    k += 1
        while k < len(fill):
            out.extend(fill[k])
            k += 1
        return out

    e("s_waitcnt vmcnt(22)")
    for g in reads(0):
        e(g[0])
    for g in stage(3):
        for l in g:
            e(l)
    for c in range(18):
        inflight_after = min(17, c + 3) - (c + 1)
        if c < 17:
            e("s_waitcnt vmcnt(%d) lgkmcnt(0)" % (11 * inflight_after))
        else:
            e("s_waitcnt lgkmcnt(0)")
        rd = reads(c + 1) if c < 17 else []
        fill = stage(c + 4) if c + 4 < 18 else []
        for l in spread(interleave(mf(c), rd, 0, rd_end), fill):
            e(l)
    if stamp:
        e("s_memtime s[62:63]")
    e("v_and_b32 v4, 15, v2")
    e("v_lshrrev_b32 v5, 2, v4")
    e("v_lshlrev_b32 v5, 3, v5")
    e("v_and_b32 v4, 3, v4")
    e("v_add_u32 v4, v4, v5")
    e("v_mul_u32_u24 v4, 1152, v4")
    e("v_lshrrev_b32 v5, 4, v2")
    e("v_lshl_add_u32 v4, v5, 3, v4")
    e("v_lshlrev_b32 v5, 4, v5")
    e("s_mul_i32 s40, s32, %d" % (32 * 1152))
    e("s_and_b32 s3, s34, 1")
    e("s_mul_i32 s3, s3, %d" % (4 * 1152))
    e("s_add_u32 s40, s40, s3")
    e("s_mul_i32 s41, s33, 288")
    e("s_lshr_b32 s3, s34, 1")
    e("s_lshl_b32 s3, s3, 5")
    e("s_add_u32 s41, s41, s3")
    e("s_add_u32 s40, s40, s41")
    e("s_lshl_b32 s41, s41, 1")
    e("s_add_u32 s41, s41, %d" % (5 * 2304))
    XR, GR = 176, 188
    for rnd in range(5):
        e("buffer_load_dwordx2 %s, v4, s[20:23], s40 offen offset:%d" % (vr(XR + 2 * rnd, 2), 64 * rnd))
        e("buffer_load_dwordx4 %s, v5, s[28:31], s41 offen offset:%d" % (vr(GR + 4 * rnd, 4), 128 * rnd))
    e("s_barrier")
    e("s_mul_i32 s3, s34, 18432")
    e("v_add_u32 v6, s3, v3")
    for t in range(18):
        e("ds_write_b128 v6, %s offset:%d" % (vr(ACC + 4 * t, 4), 1024 * t))
    e("s_lshl_b32 s3, s34, 10")
    e("v_add_u32 v6, s3, v3")
    e("v_add_u32 v7, 36864, v6")
    e("s_waitcnt lgkmcnt(0)")
    e("s_barrier")
    skip = a.newlabel("g3skip")

    def fin(rnd):
        b = ACC + 16 * rnd
        e("v_pk_add_f32 %s, %s, %s" % (vr(b, 2), vr(b, 2), vr(b + 4, 2)))
        e("v_pk_add_f32 %s, %s, %s" % (vr(b + 2, 2), vr(b + 2, 2), vr(b + 6, 2)))
        e("v_pk_add_f32 %s, %s, %s" % (vr(b + 8, 2), vr(b + 8, 2), vr(b + 12, 2)))
        e("v_pk_add_f32 %s, %s, %s" % (vr(b + 10, 2), vr(b + 10, 2), vr(b + 14, 2)))
        e("v_pk_add_f32 %s, %s, %s" % (vr(b, 2), vr(b, 2), vr(b + 8, 2)))
        e("v_pk_add_f32 %s, %s, %s" % (vr(b + 2, 2), vr(b + 2, 2), vr(b + 10, 2)))
        x = XR + 2 * rnd
        e("v_lshlrev_b32 v%d, 16, v%d" % (b + 4, x))
        e("v_and_b32 v%d, 0xffff0000, v%d" % (b + 5, x))
        e("v_lshlrev_b32 v%d, 16, v%d" % (b + 6, x + 1))
        e("v_and_b32 v%d, 0xffff0000, v%d" % (b + 7, x + 1))
        e("v_pk_fma_f32 %s, %s, %s, %s" % (vr(b, 2), vr(b, 2), vr(GR + 4 * rnd, 2), vr(b + 4, 2)))
        e("v_pk_fma_f32 %s, %s, %s, %s" % (vr(b + 2, 2), vr(b + 2, 2), vr(GR + 4 * rnd + 2, 2), vr(b + 6, 2)))
        e("v_cvt_pk_bf16_f32 v%d, v%d, v%d" % (b + 8, b, b + 1))
        e("v_cvt_pk_bf16_f32 v%d, v%d, v%d" % (b + 9, b + 2, b + 3))
        e("buffer_store_dwordx2 %s, v4, s[24:27], s40 offen offset:%d" % (vr(b + 8, 2), 64 * rnd))

    def rdred(rnd):
        for w in range(4):
            e("ds_read_b128 %s, v%d offset:%d" % (vr(ACC + 16 * rnd + 4 * w, 4), 6 + (w >> 1), (w & 1) * 18432 + 4096 * rnd))

    for rnd in range(4):
        rdred(rnd)
    e("s_waitcnt vmcnt(0) lgkmcnt(0)")
    for rnd in range(4):
        fin(rnd)
    e("s_cmp_ge_u32 s34, 2")
    e("s_cbranch_scc1 %s" % skip)
    rdred(4)
    e("s_waitcnt lgkmcnt(0)")
    fin(4)
    a.label(skip)
    if stamp:
        stamp_out(a)
    a.label(done)
    e("s_endpgm")
    return dict(name=name, grid=256, block=256, lds=4 * NSLOT * SLOT, vgpr=208, accum=208, total_vgpr=208 + 144, sgpr=72)
```

```python
from asmlib import *
from layout import *
from k_conv import stamp_out

WL = 3072
RED = 9 * WL


def gen_p3(a, name="p_kernel", stamp=False):
    a.kernel_begin(name)
    e = a.e
    done = a.newlabel("pdone")
    e("s_cmp_ge_u32 s2, 256")
    e("s_cbranch_scc1 %s" % done)
    e("s_load_dwordx2 s[4:5], s[0:1], %d" % ARG["q"])
    e("s_load_dwordx2 s[8:9], s[0:1], %d" % ARG["ws"])
    e("v_lshrrev_b32 v1, 6, v0")
    e("v_and_b32 v2, 63, v0")
    e("s_and_b32 s3, s2, 7")
    e("v_readfirstlane_b32 s34, v1")
    e("s_lshl_b32 s3, s3, 5")
    e("s_lshr_b32 s10, s2, 3")
    e("s_add_u32 s32, s3, s10")
    e("s_waitcnt lgkmcnt(0)")
    a.srd(12, 4, NB_SD)
    a.srd(16, 8, NB_SD, WS_YT)
    a.srd(20, 8, 3456 * 4, WS_MOD)
    a.srd(24, 8, NB_SD, WS_X1)
    a.srd(28, 8, NB_SD, WS_H2)
    if stamp:
        a.srd(56, 8, 1 << 20, WS_TS)
        e("s_memtime s[60:61]")
        e("s_memrealtime s[66:67]")
    e("s_mul_i32 s42, s34, %d" % WL)
    e("v_and_b32 v3, 7, v2")
    e("v_lshrrev_b32 v4, 3, v0")
    e("v_mul_u32_u24 v5, 1152, v3")
    e("v_lshl_add_u32 v5, v4, 4, v5")
    e("s_mul_i32 s33, s32, 9216")
    e("buffer_load_dwordx4 v[8:11], v5, s[12:15], s33 offen")
    e("v_lshlrev_b32 v6, 12, v0")
    e("s_lshl_b32 s3, s32, 4")
    e("s_mov_b32 m0, s42")
    e("s_nop 0")
    e("buffer_load_dwordx4 v6, s[16:19], s3 offen lds")
    e("v_lshrrev_b32 v7, 4, v2")
    e("v_mul_u32_u24 v7, 2304, v7")
    e("v_and_b32 v6, 15, v2")
    e("v_lshl_add_u32 v7, v6, 4, v7")
    e("s_lshl_b32 s3, s34, 8")
    e("s_add_u32 m0, s42, 1024")
    e("s_add_u32 s10, s3, %d" % (4 * 2304))
    e("buffer_load_dwordx4 v7, s[20:23], s3 offen lds")
    e("s_add_u32 m0, s42, 2048")
    e("s_nop 0")
    e("buffer_load_dwordx4 v7, s[20:23], s10 offen lds")
    e("v_lshrrev_b32 v6, 4, v2")
    e("v_lshlrev_b32 v6, 8, v6")
    e("v_bfe_u32 v7, v2, 1, 1")
    e("v_lshl_add_u32 v6, v7, 7, v6")
    e("v_bfe_u32 v7, v2, 2, 2")
    e("v_lshl_add_u32 v6, v7, 4, v6")
    e("v_and_b32 v7, 1, v2")
    e("v_lshl_add_u32 v6, v7, 3, v6")
    e("v_add_u32 v6, s42, v6")
    e("v_lshrrev_b32 v7, 3, v2")
    e("v_lshlrev_b32 v7, 5, v7")
    e("v_add_u32 v7, s42, v7")
    e("v_mul_u32_u24 v12, 80, v3")
    e("v_lshrrev_b32 v13, 5, v2")
    e("v_lshl_add_u32 v13, v13, 2, v12")
    e("s_lshl_b32 s3, s34, 3")
    e("v_add_u32 v13, s3, v13")
    e("v_lshrrev_b32 v14, 2, v4")
    e("v_lshlrev_b32 v14, 11, v14")
    e("v_and_b32 v15, 3, v4")
    e("v_lshl_add_u32 v14, v15, 8, v14")
    e("v_bfe_u32 v15, v2, 2, 1")
    e("v_lshl_add_u32 v14, v15, 10, v14")
    e("v_and_b32 v15, 3, v2")
    e("v_lshl_add_u32 v14, v15, 4, v14")
    e("s_lshr_b32 s3, s32, 2")
    e("s_mul_i32 s35, s3, %d" % (18 * 2048))
    e("s_and_b32 s3, s32, 3")
    e("s_lshl_b32 s3, s3, 6")
    e("s_add_u32 s35, s35, s3")
    e("s_mov_b32 s36, 0x3ae38e39")
    e("s_mov_b32 s37, 0x3727c5ac")

    X = 16
    Y = 24
    PR = 32
    R = 72

    def unpack(dst, src):
        for q in range(4):
            e("v_lshlrev_b32 v%d, 16, v%d" % (dst + 2 * q, src + q))
            e("v_and_b32 v%d, 0xffff0000, v%d" % (dst + 2 * q + 1, src + q))

    def stats_part(src, area):
        e("v_pk_add_f32 v[72:73], %s, %s" % (vr(src, 2), vr(src + 2, 2)))
        e("v_pk_mul_f32 v[74:75], %s, %s" % (vr(src, 2), vr(src, 2)))
        e("v_pk_add_f32 v[76:77], %s, %s" % (vr(src + 4, 2), vr(src + 6, 2)))
        for q in (2, 4, 6):
            e("v_pk_fma_f32 v[74:75], %s, %s, v[74:75]" % (vr(src + q, 2), vr(src + q, 2)))
        e("v_pk_add_f32 v[72:73], v[72:73], v[76:77]")
        e("v_add_f32 v72, v72, v73")
        e("v_add_f32 v74, v74, v75")
        e("s_nop 1")
        e("v_permlane32_swap_b32 v72, v74")
        e("v_add_f32 v72, v72, v74")
        e("v_mov_b32 v73, v72")
        e("s_nop 1")
        e("v_permlane16_swap_b32 v72, v73")
        e("v_add_f32 v72, v72, v73")
        e("s_nop 1")
        e("v_add_f32_dpp v72, v72, v72 row_ror:8 row_mask:0xf bank_mask:0xf")
        e("ds_write_b32 v13, v72 offset:%d" % area)

    def stats_fin(area):
        for q in range(4):
            e("ds_read_b128 %s, v12 offset:%d" % (vr(R + 4 * q, 4), area + 16 * q))
        e("ds_read_b64 %s, v12 offset:%d" % (vr(R + 16, 2), area + 64))
        e("s_waitcnt lgkmcnt(0)")
        for q in range(4):
            e("v_pk_add_f32 %s, %s, %s" % (vr(R + 4 * q, 2), vr(R + 4 * q, 2), vr(R + 4 * q + 2, 2)))
        e("v_pk_add_f32 v[72:73], v[72:73], v[76:77]")
        e("v_pk_add_f32 v[80:81], v[80:81], v[84:85]")
        e("v_pk_add_f32 v[72:73], v[72:73], v[88:89]")
        e("v_pk_add_f32 v[72:73], v[72:73], v[80:81]")
        e("v_mul_f32 v72, s36, v72")
        e("v_mul_f32 v73, s36, v73")
        e("v_fma_f32 v73, -v72, v72, v73")
        e("v_max_f32 v73, 0, v73")
        e("v_add_f32 v73, s37, v73")
        e("v_rsq_f32 v74, v73")
        e("s_nop 0")
        e("v_mul_f32 v76, v72, v74")
        e("v_mov_b32 v75, v74")
        e("v_sub_f32 v76, 0, v76")
        e("v_mov_b32 v77, v76")

    e("s_waitcnt vmcnt(3)")
    unpack(X, 8)
    stats_part(X, RED)
    e("s_waitcnt vmcnt(0) lgkmcnt(0)")
    e("s_barrier")
    e("ds_read_b64_tr_b16 v[8:9], v6")
    e("ds_read_b64_tr_b16 v[10:11], v6 offset:64")
    for p in range(5):
        e("ds_read_b128 %s, v7 offset:%d" % (vr(PR + 8 * p, 4), 1024 + 256 * p))
        e("ds_read_b128 %s, v7 offset:%d" % (vr(PR + 8 * p + 4, 4), 1024 + 256 * p + 16))
    stats_fin(RED)
    unpack(Y, 8)
    SA, CA, GA, SB, CB = [PR + 8 * p for p in range(5)]
    for q in range(0, 8, 2):
        n = vr(80 + q, 2)
        e("v_pk_add_f32 %s, %s, 1.0 op_sel_hi:[1,0]" % (vr(CA + q, 2), vr(CA + q, 2)))
        e("v_pk_fma_f32 %s, %s, v[74:75], v[76:77]" % (n, vr(X + q, 2)))
        e("v_pk_fma_f32 %s, %s, %s, %s" % (n, n, vr(CA + q, 2), vr(SA + q, 2)))
        e("v_pk_mul_f32 %s, %s, %s" % (n, n, vr(Y + q, 2)))
        e("v_pk_fma_f32 %s, %s, %s, %s" % (n, n, vr(GA + q, 2), vr(X + q, 2)))
        e("v_cvt_pk_bf16_f32 v%d, v%d, v%d" % (8 + q // 2, 80 + q, 81 + q))
    e("buffer_store_dwordx4 v[8:11], v5, s[24:27], s33 offen")
    unpack(X, 8)
    stats_part(X, RED + 640)
    for q in range(0, 8, 2):
        e("v_pk_add_f32 %s, %s, 1.0 op_sel_hi:[1,0]" % (vr(CB + q, 2), vr(CB + q, 2)))
    e("s_waitcnt lgkmcnt(0)")
    e("s_barrier")
    stats_fin(RED + 640)
    for q in range(0, 8, 2):
        n = vr(80 + q, 2)
        e("v_pk_fma_f32 %s, %s, v[74:75], v[76:77]" % (n, vr(X + q, 2)))
        e("v_pk_fma_f32 %s, %s, %s, %s" % (n, n, vr(CB + q, 2), vr(SB + q, 2)))
        e("v_cvt_pk_bf16_f32 v%d, v%d, v%d" % (24 + q // 2, 80 + q, 81 + q))
    e("buffer_store_dwordx4 v[24:27], v14, s[28:31], s35 offen")
    if stamp:
        e("s_mov_b64 s[62:63], s[60:61]")
        stamp_out(a, 4)
    a.label(done)
    e("s_endpgm")
    return dict(name=name, grid=256, block=576, lds=RED + 1280, vgpr=92, sgpr=72)
```

```python
S, D, F, FH = 2048, 576, 4608, 2304
ARG = dict(q=0, k=8, v=16, shift=24, ssmk=32, ssmD=40, bx=48, win=56, wsp=64, bsp=72, wout=80,
           c=88, wmod=96, out=104, dbg=112, ws=120)
NB_SD = S * D * 2
NB_SF = S * FH * 2
WS_MOD = 0
WS_STAT = 0x10000
WS_YT = 0x100000
WS_X1 = 0x400000
WS_H2 = 0x700000
WS_Z1 = 0xA00000
WS_Z2 = 0x1400000
WS_U = 0x1E00000
WS_KVT = 0x2800000
WS_TS = 0x3000000
```

```python
import sys
sys.path.insert(0, "tools")
from compose import compose
from k_conv import gen_conv
from k_p3 import gen_p3
from k_gemm1 import gen_gemm1
from k_gemm2 import gen_gemm2
from k_gemm3 import gen_gemm3
def full(stamp=False):
    return compose([lambda a: gen_conv(a, stamp=stamp), lambda a: gen_p3(a, stamp=stamp), lambda a: gen_gemm1(a, stamp=stamp),
                    lambda a: gen_gemm2(a, stamp=stamp), lambda a: gen_gemm3(a, stamp=stamp)])
if __name__ == "__main__":
    open("adaLN_cond__ssm_conv_h3__mixer_gmlp__prompt.s", "w").write(full(False))
    open("full_stamp.s", "w").write(full(True))
```
